```python
import torch

def _softmax(x, axis=-1):
    return torch.softmax(x, dim=axis)
def _gelu(x):
    return torch.nn.functional.gelu(x, approximate="tanh")
def _silu(x):
    return torch.nn.functional.silu(x)
def _sigmoid(x):
    return torch.sigmoid(x)
def _layernorm(x, axis=-1, eps=1e-5):
    m = x.mean(dim=axis, keepdim=True)
    v = x.var(dim=axis, keepdim=True, unbiased=False)
    return (x - m) / torch.sqrt(v + eps)
def _scatter_add(tgt, idx, src, axis=0):
    return tgt.clone().index_add_(axis, idx, src)
def _segment_sum(src, seg, n):
    out = torch.zeros((n,) + src.shape[1:], dtype=src.dtype)
    return out.index_add_(0, seg, src)
def _pad(x, pw):
    flat = tuple(v for pair in reversed(pw) for v in pair)
    return torch.nn.functional.pad(x, flat)

kernel_name = 'concat_heads__mha_block_cached__gqa_block_cached__near_ridge'

def setup_inputs():

    _w = (lambda a: (lambda t: t.to(torch.bfloat16) if t.is_floating_point() else t)(torch.as_tensor(a)))
    def _A_setup():
        B, Sq, D = 8, 160, 1024
        H, Sk, Dh = 32, 1024, 128
        return {
            "x": _w((lambda *s: torch.randn(*s, dtype=torch.bfloat16) * 0.8)(B, Sq, D)),
            "k_cache": _w((lambda *s: torch.randn(*s, dtype=torch.bfloat16) * 0.8)(B, H, Sk, Dh)),
            "v_cache": _w((lambda *s: torch.randn(*s, dtype=torch.bfloat16) * 0.05)(B, H, Sk, Dh)),
            "wq": _w((lambda *s: torch.randn(*s, dtype=torch.bfloat16) * 0.8)(D, H * Dh) * (D ** -0.5)),
            "wo": _w((lambda *s: torch.randn(*s, dtype=torch.bfloat16) * 0.05)(H * Dh, D) * ((H * Dh) ** -0.5)),
        }
    _A_in = _A_setup()

    def _B_setup():
        B, Sq, D = 8, 160, 1024
        Hq, Hkv, Sk, Dh = 32, 32, 1024, 128
        assert Hq % Hkv == 0, (Hq, Hkv)
        return {
            "x": _w((lambda *s: torch.randn(*s, dtype=torch.bfloat16) * 0.8)(B, Sq, D)),
            "k_cache": _w((lambda *s: torch.randn(*s, dtype=torch.bfloat16) * 0.8)(B, Hkv, Sk, Dh)),
            "v_cache": _w((lambda *s: torch.randn(*s, dtype=torch.bfloat16) * 0.05)(B, Hkv, Sk, Dh)),
            "wq": _w((lambda *s: torch.randn(*s, dtype=torch.bfloat16) * 0.8)(D, Hq * Dh) * (D ** -0.5)),
            "wo": _w((lambda *s: torch.randn(*s, dtype=torch.bfloat16) * 0.05)(Hq * Dh, D) * ((Hq * Dh) ** -0.5)),
        }
    _B_in = _B_setup()

    return {
        "A_x": _A_in["x"],
        "A_k_cache": _A_in["k_cache"],
        "A_v_cache": _A_in["v_cache"],
        "A_wq": _A_in["wq"],
        "A_wo": _A_in["wo"],
        "B_x": _B_in["x"],
        "B_k_cache": _B_in["k_cache"],
        "B_v_cache": _B_in["v_cache"],
        "B_wq": _B_in["wq"],
        "B_wo": _B_in["wo"],
    }

def reference(A_x, A_k_cache, A_v_cache, A_wq, A_wo, B_x, B_k_cache, B_v_cache, B_wq, B_wo):
    def _A_ref(x, k_cache, v_cache, wq, wo):
        B, Sq, D = x.shape
        H, Dh = 32, 128
        q = (lambda x, *d: x.permute(*d))((x @ wq).reshape(B, Sq, H, Dh), 0, 2, 1, 3)
        scores = torch.einsum("bhqd,bhkd->bhqk", q, k_cache) * (Dh ** -0.5)
        p = _softmax(scores, axis=-1)
        o = torch.einsum("bhqk,bhkd->bhqd", p, v_cache)
        return (lambda x, *d: x.permute(*d))(o, 0, 2, 1, 3).reshape(B, Sq, H * Dh) @ wo

    def _B_ref(x, k_cache, v_cache, wq, wo):
        B, Sq, D = x.shape
        Hq, Dh = 32, 128
        Hkv = k_cache.shape[1]
        rep = Hq // Hkv
        q = (lambda x, *d: x.permute(*d))((x @ wq).reshape(B, Sq, Hq, Dh), 0, 2, 1, 3)
        k = (lambda x, n, axis: torch.repeat_interleave(x, n, dim=axis))(k_cache, rep, axis=1)
        v = (lambda x, n, axis: torch.repeat_interleave(x, n, dim=axis))(v_cache, rep, axis=1)
        scores = torch.einsum("bhqd,bhkd->bhqk", q, k) * (Dh ** -0.5)
        p = _softmax(scores, axis=-1)
        o = torch.einsum("bhqk,bhkd->bhqd", p, v)
        return (lambda x, *d: x.permute(*d))(o, 0, 2, 1, 3).reshape(B, Sq, Hq * Dh) @ wo

    a = _A_ref(A_x, A_k_cache, A_v_cache, A_wq, A_wo)
    b = _B_ref(B_x, B_k_cache, B_v_cache, B_wq, B_wo)
    return torch.concatenate([a, b], axis=-1)
```

```python
import re

def regs_of(tok):
    tok = tok.strip()
    neg = tok.lstrip('-')
    m = re.fullmatch(r'(?:abs\()?([vas])(\d+)\)?', neg)
    if m: return [(m.group(1), int(m.group(2)))]
    m = re.fullmatch(r'([vas])\[(\d+):(\d+)\]', neg)
    if m: return [(m.group(1), i) for i in range(int(m.group(2)), int(m.group(3)) + 1)]
    if neg in ('vcc', 'm0', 'exec', 'scc'): return [(neg, 0)]
    if neg in ('vcc_lo', 'vcc_hi'): return [('vcc', 0)]
    if neg in ('exec_lo', 'exec_hi'): return [('exec', 0)]
    return []

TRANS = ('v_exp_f32', 'v_rcp_f32', 'v_log_f32', 'v_rsq_f32', 'v_sqrt_f32')

class Ins:
    def __init__(self, text, tag=None, needs=None):
        self.text = text
        self.tag = tag
        self.needs = needs
        self.w = set(); self.r = set()
        self.A = set(); self.C = set()
        self.passes = 0
        t = text.split(';')[0].strip()
        if needs is not None:
            self.kind = 'need'; self.op = 'need'; return
        if t.endswith(':'):
            self.kind = 'label'; self.op = t; return
        if t.startswith('.') or not t:
            self.kind = 'dir'; self.op = t; return
        parts = t.split(None, 1)
        op = self.op = parts[0]
        ops = []
        if len(parts) > 1:
            ops = [x.strip() for x in parts[1].split(',')]
            last = ops[-1].split()
            mods = last[1:]
            ops[-1] = last[0]
        else:
            mods = []
        self.mods = mods
        R = lambda i: regs_of(ops[i]) if i < len(ops) else []
        if op.startswith('v_mfma'):
            self.kind = 'mfma'
            self.passes = 4 if '16x16x32' in op else 8
            self.w = set(R(0)); self.A = set(R(1)) | set(R(2)); self.C = set(R(3))
            self.r = self.A | self.C
            self.D0 = ops[0]; self.C0 = ops[3]
        elif op.startswith('ds_read') or op.startswith('ds_bpermute') or op.startswith('ds_swizzle'):
            self.kind = 'dsr'; self.w = set(R(0))
            for i in range(1, len(ops)): self.r |= set(R(i))
        elif op.startswith('ds_write'):
            self.kind = 'dsw'
            for i in range(len(ops)): self.r |= set(R(i))
        elif op.startswith('buffer_load') or op.startswith('global_load'):
            if 'lds' in mods:
                self.kind = 'dma'
                for i in range(len(ops)): self.r |= set(R(i))
                self.r.add(('m0', 0))
            else:
                self.kind = 'vld'; self.w = set(R(0))
                for i in range(1, len(ops)): self.r |= set(R(i))
        elif op.startswith('buffer_store') or op.startswith('global_store'):
            self.kind = 'vst'
            for i in range(len(ops)): self.r |= set(R(i))
            self.data = set(R(0)) if op.startswith('buffer') else set(R(1))
            self.wide = op.endswith('x4') or op.endswith('x3')
        elif op.startswith('buffer_atomic') or op.startswith('global_atomic'):
            self.kind = 'vld' if 'sc0' in mods else 'vst'
            for i in range(len(ops)): self.r |= set(R(i))
            if 'sc0' in mods: self.w = set(R(0))
            self.data = set(); self.wide = False
        elif op in ('buffer_wbl2', 'buffer_inv'):
            self.kind = 'vst'; self.data = set(); self.wide = False
        elif op == 's_waitcnt':
            self.kind = 'wait'
            m = re.search(r'vmcnt\((\d+)\)', t); self.vm = int(m.group(1)) if m else None
            m = re.search(r'lgkmcnt\((\d+)\)', t); self.lgkm = int(m.group(1)) if m else None
        elif op == 's_nop':
            self.kind = 'nop'; self.n = int(ops[0], 0) + 1
        elif op == 's_barrier':
            self.kind = 'barrier'
        elif op.startswith('s_cbranch') or op == 's_branch' or op == 's_endpgm':
            self.kind = 'branch'
        elif op.startswith('s_load') or op.startswith('s_memtime') or op.startswith('s_memrealtime') or op.startswith('s_buffer_load'):
            self.kind = 'smem'; self.w = set(R(0))
            for i in range(1, len(ops)): self.r |= set(R(i))
        elif op.startswith('s_'):
            self.kind = 'salu'
            if op.startswith('s_cmp') or op in ('s_setprio', 's_sleep', 's_setreg_b32', 's_setreg_imm32_b32'):
                for i in range(len(ops)): self.r |= set(R(i))
            else:
                self.w = set(R(0))
                for i in range(1, len(ops)): self.r |= set(R(i))
                if 'saveexec' in op: self.w.add(('exec', 0))
        elif op.startswith('v_'):
            base = op.replace('_e32', '').replace('_e64', '')
            self.kind = 'trans' if base in TRANS else 'valu'
            self.w = set(R(0))
            for i in range(1, len(ops)): self.r |= set(R(i))
            if 'permlane' in op and 'swap' in op:
                self.w |= set(R(1)); self.r |= set(R(0))
            if base.startswith('v_fmac') or base.startswith('v_writelane') or base.startswith('v_dot2c'):
                self.r |= set(R(0))
            if base.startswith('v_add_co') or base.startswith('v_addc_co') or base.startswith('v_sub_co'):
                self.w |= set(R(1))
            if base == 'v_cndmask_b32' and len(ops) == 3: self.r.add(('vcc', 0))
        else:
            raise ValueError('unknown instruction: ' + text)

    def states(self):
        if self.kind == 'nop': return self.n
        if self.kind in ('label', 'dir', 'need'): return 0
        return 1

def is_valu(i): return i.kind in ('valu', 'trans')
def vregs(s): return {x for x in s if x[0] in 'va' and len(x[0]) == 1}
def sregs(s): return {x for x in s if x[0] in ('s', 'vcc')}

def required_gap(p, c):
    g = 0
    if is_valu(p):
        pw = vregs(p.w)
        if c.kind == 'mfma' and pw & c.r: g = max(g, 2)
        if p.kind == 'trans' and c.kind == 'valu' and pw & c.r: g = max(g, 1)
        if is_valu(c) and 'permlane' in c.op and pw & c.r: g = max(g, 2)
        if is_valu(c) and ('readfirstlane' in c.op or 'readlane' in c.op) and pw & c.r: g = max(g, 1)
        if is_valu(c) and ('dpp' in c.text or 'row_' in c.text or 'quad_perm' in c.text) and pw & c.r: g = max(g, 2)
        if p.op.startswith('v_dot') and c.op != p.op and pw & (c.r | c.w): g = max(g, 3)
        ps = sregs(p.w)
        if ps:
            if is_valu(c) and ps & c.r: g = max(g, 4 if 'lane' in c.op else 2)
            if c.kind in ('vld', 'vst', 'dma') and ps & c.r: g = max(g, 5)
            if c.kind in ('salu', 'branch', 'smem') and ps & c.r: g = max(g, 1)
            if c.kind == 'branch' and ('vcc', 0) in ps and 'vcc' in c.op: g = max(g, 5)
    if p.kind == 'mfma':
        big = 8 if p.passes == 4 else 12
        if c.kind == 'mfma':
            if p.w & c.A: g = max(g, big)
            if p.w & c.C and not (p.D0 == c.C0 and p.passes == c.passes): g = max(g, p.passes + 2)
            if p.w & c.w and not (p.w & c.C): g = max(g, p.passes + 2)
        elif is_valu(c):
            if p.w & (c.r | c.w): g = max(g, big)
            if p.C & c.w: g = max(g, 3 if p.passes == 4 else 7)
        elif c.kind in ('dsr', 'dsw', 'vld', 'vst', 'dma'):
            if p.w & (c.r | c.w): g = max(g, big)
    if p.kind == 'salu' and ('m0', 0) in p.w and c.kind == 'dma': g = max(g, 1)
    if p.kind == 'vst' and getattr(p, 'wide', False) and p.data & c.w:
        g = max(g, 2 if is_valu(c) else 1)
    return g

class Block:
    def __init__(self, name): self.name = name; self.ins = []
    def __call__(self, text, tag=None):
        for t in text.split('\n'):
            t = t.strip()
            if t: self.ins.append(Ins(t, tag=tag))
    def need(self, *tags): self.ins.append(Ins('', needs=list(tags)))
    def extend(self, l): self.ins.extend(l)

def resolve(traces, lookahead=1000, verbose=False):
    for it in range(50):
        changed = False
        for trace in traces:
            lg = []
            vm = []
            issued = {}; consumed = {}
            smem = False
            pos = 0
            for b in trace:
                i = 0
                while i < len(b.ins):
                    x = b.ins[i]
                    touch = x.r | x.w
                    nl = None; nv = None
                    want = set()
                    if x.kind == 'need':
                        for tg in x.needs:
                            if tg.endswith('+'):
                                g = consumed.get(tg[:-1], 0)
                                assert g < issued.get(tg[:-1], 0), ('group not issued yet', tg, b.name)
                                want.add((tg[:-1], g))
                    if x.kind not in ('wait', 'label', 'dir', 'nop'):
                        for k in range(len(lg) - 1, -1, -1):
                            if lg[k][0].w & touch:
                                nl = len(lg) - 1 - k; break
                        for k in range(len(vm) - 1, -1, -1):
                            hit = vm[k][0].w & touch
                            if x.kind == 'need' and (vm[k][0].tag in x.needs or vm[k][2] in want): hit = True
                            if hit:
                                nv = len(vm) - 1 - k; break
                        if x.kind == 'need' and 'lgkm' in x.needs and lg: nl = 0
                    if nl is not None or nv is not None:
                        if nl is not None:
                            while nl > 0 and pos - lg[len(lg) - nl][1] >= lookahead: nl -= 1
                            nl = min(nl, 15)
                        if nv is not None: nv = min(nv, 63)
                        prev = b.ins[i - 1] if i > 0 else None
                        if prev is not None and prev.kind == 'wait' and getattr(prev, 'auto', False):
                            if nl is None: nl = prev.lgkm
                            elif prev.lgkm is not None: nl = min(nl, prev.lgkm)
                            if nv is None: nv = prev.vm
                            elif prev.vm is not None: nv = min(nv, prev.vm)
                            del b.ins[i - 1]; i -= 1
                        s = 's_waitcnt' + (f' vmcnt({nv})' if nv is not None else '') + (f' lgkmcnt({nl})' if nl is not None else '')
                        wi = Ins(s); wi.auto = True
                        b.ins.insert(i, wi)
                        changed = True
                        x = wi
                    if x.kind == 'wait':
                        if x.lgkm is not None: lg = lg[len(lg) - x.lgkm:] if x.lgkm < len(lg) else lg
                        if x.lgkm == 0: lg = []
                        if x.vm is not None: vm = vm[len(vm) - x.vm:] if x.vm < len(vm) else vm
                        if x.vm == 0: vm = []
                    elif x.kind == 'need':
                        for tg, g in want: consumed[tg] = g + 1
                        for tg in x.needs:
                            if tg.endswith('='):
                                issued[tg[:-1]] = consumed[tg[:-1]] = issued.get(tg[:-1], 0) + 1
                            if tg.endswith('$'):
                                issued[tg[:-1]] = issued.get(tg[:-1], 0) + 1
                    elif x.kind in ('dsr', 'dsw'):
                        lg.append((x, pos))
                    elif x.kind == 'smem':
                        assert not lg or True
                    elif x.kind in ('vld', 'vst', 'dma') and x.tag != '~':
                        tg = (x.tag or '').rstrip('!')
                        vm.append((x, pos, (tg, issued.get(tg, 0))))
                        if x.tag and x.tag.endswith('!'): issued[tg] = issued.get(tg, 0) + 1
                        assert len(vm) <= 63, ('too many VMEM ops outstanding', b.name)
                    pos += x.states()
                    i += 1
        if not changed: break
    else:
        raise RuntimeError('waitcnt pass did not converge')
    for it in range(50):
        changed = False
        for trace in traces:
            hist = []
            pos = 0
            for b in trace:
                i = 0
                while i < len(b.ins):
                    x = b.ins[i]
                    if x.states() and x.kind != 'nop':
                        need = 0
                        for (p, pp) in reversed(hist):
                            dist = pos - pp - 1
                            if dist >= 20: break
                            g = required_gap(p, x)
                            if g > dist: need = max(need, g - dist)
                        if need:
                            if verbose: print('nop', need, 'before', x.text)
                            n = Ins(f's_nop {need - 1}')
                            b.ins.insert(i, n)
                            changed = True
                            pos += n.states(); i += 1
                        hist.append((x, pos))
                        hist = hist[-24:]
                    pos += x.states()
                    i += 1
        if not changed: break
    else:
        raise RuntimeError('hazard pass did not converge')

def render(blocks):
    out = []
    for b in blocks:
        out.append(f'; ---- {b.name}')
        for x in b.ins:
            if x.kind == 'need': continue
            out.append(x.text if x.kind in ('label', 'dir') else '    ' + x.text)
    return '\n'.join(out)

def interleave(mfmas, fillers):
    out = []
    def put(it):
        if isinstance(it, Ins): out.append(it)
        elif isinstance(it, tuple): out.append(Ins(it[0], tag=it[1]))
        else: out.append(Ins(it))
    for it in fillers.get(-1, []): put(it)
    for i, m in enumerate(mfmas):
        put(m)
        for it in fillers.get(i, []): put(it)
    return out

def NEED(*tags): return Ins('', needs=list(tags))

def kernel_text(name, blocks, nv, acc, ns=96):
    s = f'.text\n.globl {name}\n.p2align 8\n.type {name},@function\n{name}:\n'
    s += render(blocks) + '\n'
    d = f'''.section .rodata,"a"
.p2align 6
.amdhsa_kernel {name}
  .amdhsa_next_free_vgpr {nv}
  .amdhsa_next_free_sgpr {ns}
  .amdhsa_accum_offset {acc}
  .amdhsa_group_segment_fixed_size 0
  .amdhsa_kernarg_size 104
  .amdhsa_user_sgpr_count 2
  .amdhsa_user_sgpr_kernarg_segment_ptr 1
  .amdhsa_system_sgpr_workgroup_id_x 1
.end_amdhsa_kernel
'''
    return s, d

def est(block, show=False, dma=4):
    t = 0; pipe = 0; valu_ok = 0; n = 0; last = 0; cur = []
    over = []
    for x in block.ins:
        if x.kind in ('label', 'dir', 'need'): continue
        if x.kind == 'mfma':
            t = max(t, pipe)
            if n and t - last > 4 * lastp: over.append((n - 1, t - last, cur))
            last = t; lastp = x.passes; cur = []; n += 1
            pipe = t + 4 * x.passes; valu_ok = t + 8; t += 4
        else:
            cur.append(x.op)
            if is_valu(x):
                t = max(t, valu_ok); t += 8 if x.kind == 'trans' else 4
            elif x.kind == 'nop': t += 4 * x.n
            elif x.kind in ('dma', 'vld', 'vst'): t += dma
            else: t += 4
    if show:
        for o in over: print('   gap', o)
    return max(t, pipe), n
```

```python
from asmgen import *
import struct, math

def f2u(x): return struct.unpack('<I', struct.pack('<f', x))[0]
MF = 'v_mfma_f32_16x16x32_bf16'
def r4(p, b): return f'{p}[{b}:{b+3}]'
def lines(t): return [x.strip() for x in t.split('\n') if x.strip()]

def put(Bk, items):
    for it in items:
        if isinstance(it, tuple): Bk(it[0], tag=it[1])
        elif isinstance(it, Ins): Bk.ins.append(it)
        elif isinstance(it, list): put(Bk, it)
        else: Bk(it)

def flat(items):
    o = []
    for it in items:
        if isinstance(it, list): o += flat(it)
        else: o.append(it)
    return o

def weave(main, side, every):
    o = []; k = 0
    for i, m in enumerate(main):
        o.append(m)
        if (i + 1) % every == 0 and k < len(side):
            o.append(side[k]); k += 1
    o += side[k:]
    return flat(o)

WS_O = 0
WS_PX = 32 << 20
WS_FL = 56 << 20
WS_ST = 65 << 20

def gen(name, stamp=False, kv_flags=' nt', x_flags='', w_flags='', wo_flags='', ablG=(), ablA=(), ablO=(), report=False):
    def Qb(ks, rt): return (ks * 5 + rt) * 4
    def Q(ks, rt): return r4('v', Qb(ks, rt))
    def Sb(kt, rt): return 80 + (kt * 5 + rt) * 4
    def S(kt, rt): return r4('v', Sb(kt, rt))
    def Pb(par, rt): return 120 + (par * 5 + rt) * 4
    def Pf(par, rt): return r4('v', Pb(par, rt))
    def NM(rt): return r4('v', 160 + rt * 4)
    ACCB = [80, 100, 60, 120, 140, 160, 180, 200]
    def accb(dt, rt): return ACCB[dt] + rt * 4
    def acc(dt, rt): return r4('v', accb(dt, rt))
    def Ob(dt, rt): return (dt * 5 + rt) * 4
    def O(dt, rt): return r4('a', Ob(dt, rt))
    def L(rt): return r4('a', 160 + rt * 4)
    ONES = 'a[180:183]'
    def Kf(buf): return r4('a', 184 + buf * 4)
    def Vf(buf, e=None):
        b = 216 + buf * 4
        return r4('a', b) if e is None else f'a[{b+2*e}:{b+2*e+1}]'
    def Wf(buf, e=None):
        b = 184 + buf * 4 if buf < 4 else 240 + (buf - 4) * 4
        return r4('a', b) if e is None else f'a[{b+2*e}:{b+2*e+1}]'
    def Xf(par, rt): return r4('a', 200 + (par * 5 + rt) * 4)
    vK = [220, 221, 222, 223]; vV = [224, 225]
    vL, vI4, vI15 = 226, 227, 228
    T = [229, 230, 231, 232]
    vWA = list(range(233, 241)); vXA = [241, 242]
    vX = list(range(243, 248)); vW = list(range(248, 252))
    vFo, vF, vOne, vFs = 252, 253, 254, 255
    vKA = [list(range(233, 237)), list(range(237, 241))]
    vVA = [list(range(180, 188)), list(range(188, 196))]
    vSt, vSg = 196, 197
    SX, SW, SK, SV, SO = 8, 12, 16, 20, 24
    sWave, sHd, sRh, sBr, sB, sH = 28, 29, 30, 31, 32, 33
    sXo, sWo, sKo, sVo = 34, 35, 36, 37
    sCnt = 38
    sWm, sWend, sWrp, sWd = 39, 40, 41, 42
    sXm, sXm2, sXend, sXrp, sXd = 43, 44, 45, 46, 47
    sKVm = 48
    sT = [49, 50, 51, 52]
    sScale = 53
    sWneg, sXneg = 54, 55
    SF = 92
    sWt, sXt, sJ, sQd, sMask, sSpin = 96, 97, 98, 99, 100, 101
    SPIN = 200000
    LDS = 163840
    nstamp = [0]
    def STAMP(Bk, real=False):
        if stamp:
            Bk(f's_mem{"real" if real or stamp == "real" else ""}time s[{68+2*nstamp[0]}:{69+2*nstamp[0]}]'); nstamp[0] += 1

    class Cfg: pass
    cq = Cfg(); cq.NW, cq.NX, cq.wf, cq.xf = 4, 3, w_flags, x_flags
    cq.WB, cq.XB = 32768, 98304
    cq.wo_adv = [f's_add_u32 s{sWo}, s{sWo}, {32*8192}']
    cq.xo_adv = [f's_add_u32 s{sXo}, s{sXo}, 128', f's_cmp_lt_u32 s{sXo}, 2048', f's_cselect_b32 s{SX+2}, s{SX+2}, 0']
    co = Cfg(); co.NW, co.NX, co.wf, co.xf = 5, 4, wo_flags, ' sc1'
    co.WB, co.XB = 81920, 0
    co.wo_adv = [f's_add_u32 s{sWt}, s{sWt}, 0x10000', f's_xor_b32 s{sWo}, s{sWt}, s{sJ}']
    co.xo_adv = [f's_add_u32 s{sXt}, s{sXt}, 1', f's_xor_b32 s{sXo}, s{sXt}, s{sQd}', f's_mul_i32 s{sXo}, s{sXo}, 20480']
    def w_piece(c, j):
        return [f's_mov_b32 m0, s{sWm}', (f'buffer_load_dwordx4 v{vW[j]}, s[{SW}:{SW+3}], s{sWo} offen offset:{j*1024}{c.wf} lds', 'W!' if j == 3 else 'W')]
    def w_adv1(c): return c.wo_adv + [f's_add_u32 s{sWm}, s{sWm}, 16384']
    def w_adv2(c): return [f's_cmp_eq_u32 s{sWm}, s{sWend}', f's_cselect_b32 s{sT[3]}, {c.NW*16384}, 0', f's_sub_u32 s{sWm}, s{sWm}, s{sT[3]}']
    def x_piece(c, j):
        if j < 4:
            return [f's_mov_b32 m0, s{sXm}', (f'buffer_load_dwordx4 v{vX[j]}, s[{SX}:{SX+3}], s{sXo} offen offset:{j*1024}{c.xf} lds', 'X')]
        return [f's_mov_b32 m0, s{sXm2}', (f'buffer_load_dwordx4 v{vX[4]}, s[{SX}:{SX+3}], s{sXo} offen{c.xf} lds', 'X!')]
    def x_adv1(c): return [f's_add_u32 s{sXm}, s{sXm}, 20480', f's_cmp_eq_u32 s{sXm}, s{sXend}', f's_cselect_b32 s{sT[3]}, {c.NX*20480}, 0',
                           f's_sub_u32 s{sXm}, s{sXm}, s{sT[3]}', f's_add_u32 s{sXm2}, s{sXm}, 4096']
    def w_tile(c, wrap=True): return [w_piece(c, j) for j in range(3)] + [w_piece(c, 3) + w_adv1(c) + (w_adv2(c) if wrap else [])]
    def x_tile(c): return [x_piece(c, j) for j in range(4)] + [x_piece(c, 4) + x_adv1(c) + c.xo_adv]
    def wrd(dt, e): return f'ds_read_b64_tr_b16 {Wf(dt, e)}, v{vWA[dt]} offset:{e*1024}'
    def wupd(dt): return f'v_add_u32 v{vWA[dt]}, s{sWd}, v{vWA[dt]}'
    def xrd(ks, rt): return f'ds_read_b128 {Xf(ks, rt)}, v{vXA[ks]} offset:{rt*2048}'
    def w_radv(c): return [f's_add_u32 s{sWrp}, s{sWrp}, 1', f's_cmp_eq_u32 s{sWrp}, {c.NW}', f's_cselect_b32 s{sWd}, s{sWneg}, 16384', f's_cselect_b32 s{sWrp}, 0, s{sWrp}']
    def x_radv(c): return [f's_add_u32 s{sXrp}, s{sXrp}, 1', f's_cmp_eq_u32 s{sXrp}, {c.NX}', f's_cselect_b32 s{sXd}, s{sXneg}, 20480', f's_cselect_b32 s{sXrp}, 0, s{sXrp}']
    def gemm_head(c):
        return ([wrd(0, 0), wrd(0, 1)] + [xrd(0, rt) for rt in range(5)] + [[wrd(dt, 0), wrd(dt, 1)] for dt in range(1, 7)]
                + [wupd(dt) for dt in range(7)] + [f'v_add_u32 v{vXA[0]}, s{sXd}, v{vXA[0]}'])
    def gemm_body(c, zero=False, xload=True, xneed=True, extra={}, nit=None):
        mf = []; F = {}
        def add(g, *its): F.setdefault(g, []).extend(flat(list(its)))
        for par in range(2):
            o = 40 * par
            mf += [f'{MF} {acc(dt, rt)}, {Wf(dt)}, {Xf(par, rt)}, {0 if zero and par == 0 else acc(dt, rt)}' for dt in range(8) for rt in range(5)]
            add(o + 0, wrd(7, 0)); add(o + 1, wrd(7, 1)); add(o + 2, wupd(7))
            u = w_radv(c); add(o + 3, u[:2]); add(o + 4, u[2:])
            u = w_adv2(c); add(o + 5, u[:2]); add(o + 6, u[2:])
            add(o + 8, NEED(*(['W+', 'lgkm'] + (['X+'] if par == 1 and xneed else []))), 's_barrier')
            for dt, g in [(0, 9), (1, 11), (2, 15), (3, 20), (4, 25), (5, 30), (6, 35)]:
                add(o + g, wrd(dt, 0)); add(o + g + 1, wrd(dt, 1), wupd(dt))
            for rt, g in enumerate([13, 18, 23, 28, 33]): add(o + g, xrd(1 - par, rt))
            add(o + 33, f'v_add_u32 v{vXA[1-par]}, s{sXd}, v{vXA[1-par]}')
            for j, g in enumerate([14, 24, 29, 37] if par == 0 else [14, 22, 29, 37]):
                u = w_piece(c, j); add(o + g - 1, u[0]); add(o + g, u[1])
            add(o + 38, w_adv1(c))
        if xload:
            for j, g in enumerate([2, 7, 19, 32, 42]):
                u = x_piece(c, j); add(g - 1, u[0]); add(g, u[1])
            u = x_adv1(c); add(57, u[:3]); add(59, u[3:]); add(64, c.xo_adv)
        u = x_radv(c); add(65, u[0]); add(67, u[1:])
        if nit:
            add(72, f's_add_u32 s{sCnt}, s{sCnt}, 1')
            add(79, f's_cmp_lt_u32 s{sCnt}, {nit}')
        for g, its in extra.items(): add(g, its)
        for g in F: F[g].sort(key=lambda it: 1 if (isinstance(it, str) and it.startswith('v_')) else 0)
        return interleave(mf, F)
    def k_piece(slot, j):
        u = [f's_add_u32 m0, s{sKVm}, {slot*32768}', (f'buffer_load_dwordx4 v{vK[j]}, s[{SK}:{SK+3}], s{sKo} offen offset:{j*1024}{kv_flags} lds', f'K{slot}')]
        if j == 3: u.append(f's_add_u32 s{sKo}, s{sKo}, 8192')
        return u
    def v_piece(slot, j):
        u = [f's_add_u32 m0, s{sKVm}, {slot*32768+8192}', (f'buffer_load_dwordx4 v{vV[j&1]}, s[{SV}:{SV+3}], s{sVo} offen offset:{j*1024}{kv_flags} lds', f'V{slot}')]
        if j == 3: u.append(f's_add_u32 s{sVo}, s{sVo}, 8192')
        return u
    def srd(d, ptr, off, nrec):
        return lines(f'''
        s_add_u32 s{d}, s{ptr}, {off}
        s_addc_u32 s{d+1}, s{ptr+1}, 0
        s_and_b32 s{d+1}, s{d+1}, 0xffff
        s_mov_b32 s{d+2}, {nrec}
        s_mov_b32 s{d+3}, 0x20000''')

    P = Block('prologue')
    P(f'''
    s_cmp_ge_u32 s2, 256
    s_cbranch_scc1 {name}_done
    s_and_b32 s3, s2, 4
    s_mul_i32 s3, s3, 10
    s_add_u32 s66, s0, s3
    s_addc_u32 s67, s1, 0
    s_load_dwordx8 s[56:63], s[66:67], 0
    s_load_dwordx2 s[64:65], s[66:67], 32
    s_load_dwordx4 s[4:7], s[0:1], 80
    s_load_dwordx2 s[90:91], s[0:1], 96
    ''')
    STAMP(P); STAMP(P, True)
    P(f'''
    v_lshrrev_b32 v1, 6, v0
    v_and_b32 v{vL}, 63, v0
    v_readfirstlane_b32 s{sWave}, v1
    s_bfe_u32 s{sBr}, s2, 0x10002
    s_lshr_b32 s{sB}, s2, 5
    s_and_b32 s{sQd}, s2, 3
    s_bfe_u32 s{sJ}, s2, 0x20003
    s_lshl_b32 s{sT[0]}, s{sQd}, 2
    s_add_u32 s{sT[0]}, s{sT[0]}, s{sJ}
    s_lshr_b32 s{sHd}, s{sWave}, 1
    s_and_b32 s{sRh}, s{sWave}, 1
    s_lshl_b32 s{sH}, s{sT[0]}, 1
    s_add_u32 s{sH}, s{sH}, s{sHd}
    v_lshrrev_b32 v{vI4}, 4, v{vL}
    v_and_b32 v{vI15}, 15, v{vL}
    s_lshl_b32 s{sT[0]}, s{sRh}, 17
    v_lshlrev_b32 v{T[0]}, 1, v{vI4}
    v_xor_b32 v{T[0]}, v{T[0]}, v{vI15}
    v_lshlrev_b32 v{T[0]}, 4, v{T[0]}
    v_lshl_add_u32 v{T[0]}, v{vI4}, 13, v{T[0]}
    v_add_u32 v{vW[0]}, s{sT[0]}, v{T[0]}
    v_add_u32 v{vW[1]}, {4*8192 - 1024}, v{vW[0]}
    v_xor_b32 v{T[0]}, 128, v{vW[0]}
    v_add_u32 v{vW[2]}, {8*8192 - 2048}, v{T[0]}
    v_add_u32 v{vW[3]}, {12*8192 - 3072}, v{T[0]}
    v_lshrrev_b32 v{T[0]}, 3, v{vL}
    v_and_b32 v{T[1]}, 7, v{vL}
    v_xor_b32 v{T[1]}, v{T[1]}, v{vI4}
    v_lshlrev_b32 v{T[1]}, 4, v{T[1]}
    v_lshl_add_u32 v{T[0]}, v{T[0]}, 11, v{T[1]}
    s_lshl_b32 s{sT[0]}, s{sRh}, 6
    v_xor_b32 v{T[0]}, s{sT[0]}, v{T[0]}
    s_mul_i32 s{sT[0]}, s{sWave}, {5*16384}
    v_add_u32 v{vX[0]}, s{sT[0]}, v{T[0]}
    v_xor_b32 v{T[0]}, 64, v{vX[0]}
    v_add_u32 v{vX[1]}, {16384 - 1024}, v{T[0]}
    v_add_u32 v{vX[2]}, {2*16384 - 2048}, v{vX[0]}
    v_add_u32 v{vX[3]}, {3*16384 - 3072}, v{T[0]}
    v_add_u32 v{vX[4]}, {4*16384}, v{vX[0]}
    s_mov_b32 s{sXo}, 0
    s_mov_b32 s{sWo}, 0
    s_lshl_b32 s{sT[0]}, s{sWave}, 12
    s_add_u32 s{sWm}, s{sT[0]}, {cq.WB}
    s_add_u32 s{sWend}, s{sWm}, {cq.NW*16384}
    s_mul_i32 s{sT[0]}, s{sWave}, 5120
    s_add_u32 s{sXm}, s{sT[0]}, {cq.XB}
    s_add_u32 s{sXm2}, s{sXm}, 4096
    s_add_u32 s{sXend}, s{sXm}, {cq.NX*20480}
    s_mul_i32 s{sT[0]}, s{sB}, 327680
    s_lshl_b32 s{sT[1]}, s{sH}, 8
    s_waitcnt lgkmcnt(0)
    ''')
    put(P, srd(SW, 62, f's{sT[1]}', 1023*8192+256)); put(P, srd(SX, 56, f's{sT[0]}', 327680))
    put(P, w_tile(cq)); put(P, x_tile(cq))
    rest = lines(f'''
    v_bfe_u32 v{T[0]}, v{vL}, 2, 2
    v_lshl_add_u32 v{T[1]}, v{vI4}, 3, v{T[0]}
    v_lshlrev_b32 v{T[1]}, 8, v{T[1]}
    v_and_b32 v{T[2]}, 3, v{vL}
    v_lshl_add_u32 v{T[1]}, v{T[2]}, 3, v{T[1]}
    s_lshl_b32 s{sT[0]}, s{sHd}, 13
    s_add_u32 s{sT[0]}, s{sT[0]}, {cq.WB}
    v_add_u32 v{T[1]}, s{sT[0]}, v{T[1]}
    v_bfe_u32 v{T[2]}, v{vL}, 2, 3
    ''')
    for dt in range(8): rest += [f'v_xor_b32 v{T[3]}, {dt}, v{T[2]}', f'v_lshl_add_u32 v{vWA[dt]}, v{T[3]}, 5, v{T[1]}']
    rest += lines(f'''
    s_mul_i32 s{sT[0]}, s{sRh}, {80*128}
    s_add_u32 s{sT[0]}, s{sT[0]}, {cq.XB}
    v_lshlrev_b32 v{T[1]}, 7, v{vI15}
    v_add_u32 v{T[1]}, s{sT[0]}, v{T[1]}
    v_lshrrev_b32 v{T[2]}, 1, v{vI15}
    v_xor_b32 v{T[3]}, v{vI4}, v{T[2]}
    v_lshl_add_u32 v{vXA[0]}, v{T[3]}, 4, v{T[1]}
    v_xor_b32 v{vXA[1]}, 64, v{vXA[0]}
    s_mov_b32 s{sWrp}, 0
    s_mov_b32 s{sXrp}, 0
    s_mov_b32 s{sWneg}, {-(cq.NW-1)*16384}
    s_mov_b32 s{sXneg}, {-(cq.NX-1)*20480}
    s_mov_b32 s{sCnt}, 0
    ''')
    rest += [f'v_mov_b32 v{60+i}, 0' for i in range(160)]
    fill = w_tile(cq) + x_tile(cq) + w_tile(cq) + w_tile(cq, wrap=False)
    put(P, weave(rest, fill, max(1, len(rest) // (len(fill) + 1))))
    P(f'''
    s_lshl_b32 s{sT[0]}, s{sB}, 5
    s_add_u32 s{sT[0]}, s{sT[0]}, s{sH}
    s_lshl_b32 s{sT[1]}, s{sT[0]}, 18
    ''')
    put(P, srd(SK, 58, f's{sT[1]}', 262144)); put(P, srd(SV, 60, f's{sT[1]}', 262144))
    P(f'''
    s_lshl_b32 s{sT[1]}, s{sBr}, 8
    s_add_u32 s{sT[0]}, s{sT[0]}, s{sT[1]}
    s_mul_i32 s{sT[0]}, s{sT[0]}, 40960
    ''')
    put(P, srd(SO, 90, f's{sT[0]}', 40960))
    put(P, srd(SF, 90, WS_FL, 256*128))
    P(f'''
    s_mov_b32 s{sKo}, 0
    s_mov_b32 s{sVo}, 0
    s_lshl_b32 s{sKVm}, s{sHd}, 14
    s_lshl_b32 s{sT[0]}, s{sRh}, 12
    s_add_u32 s{sKVm}, s{sKVm}, s{sT[0]}
    s_mov_b32 s{sScale}, {f2u(math.log2(math.e) / math.sqrt(128.0))}
    v_xor_b32 v{T[0]}, v{vI4}, v{vI15}
    v_lshlrev_b32 v{T[0]}, 4, v{T[0]}
    v_lshl_add_u32 v{T[0]}, v{vI4}, 8, v{T[0]}
    v_add_u32 v{vK[0]}, s{sT[0]}, v{T[0]}
    v_xor_b32 v{vK[1]}, 64, v{vK[0]}
    v_xor_b32 v{vK[2]}, 128, v{vK[0]}
    v_xor_b32 v{vK[3]}, 192, v{vK[0]}
    v_lshlrev_b32 v{T[0]}, 1, v{vI4}
    v_xor_b32 v{T[0]}, v{T[0]}, v{vI15}
    v_lshlrev_b32 v{T[0]}, 4, v{T[0]}
    v_lshl_add_u32 v{T[0]}, v{vI4}, 8, v{T[0]}
    v_add_u32 v{vV[0]}, s{sT[0]}, v{T[0]}
    v_xor_b32 v{vV[1]}, 128, v{vV[0]}
    ''')
    P(f'''
    s_lshl_b32 s{sT[0]}, s2, 7
    s_lshl_b32 s{sT[1]}, s{sWave}, 2
    s_add_u32 s{sT[0]}, s{sT[0]}, s{sT[1]}
    v_lshlrev_b32 v{vFs}, 20, v{vL}
    v_add_u32 v{vFs}, s{sT[0]}, v{vFs}
    v_mov_b32 v{vOne}, 0
    buffer_store_dword v{vOne}, v{vFs}, s[{SF}:{SF+3}], 0 offen sc1
    buffer_store_dword v{vOne}, v{vFs}, s[{SF}:{SF+3}], 0 offen offset:16 sc1
    v_mov_b32 v{T[0]}, 0x3f803f80
    ''')
    az = [f'v_accvgpr_write_b32 a{i}, 0' for i in range(180)] + [f'v_accvgpr_write_b32 a{180+i}, v{T[0]}' for i in range(4)]
    put(P, weave(az, [k_piece(0, j) for j in range(4)] + [v_piece(0, j) for j in range(4)], 20))
    put(P, w_radv(cq)); put(P, x_radv(cq))
    P.need('W+', 'X+')
    P('s_barrier')
    STAMP(P)
    put(P, gemm_head(cq))

    G = Block('qproj loop')
    G(f'{name}_qloop:')
    G.extend(gemm_body(cq, nit=16))
    G(f's_cbranch_scc1 {name}_qloop')

    C = Block('q convert + attention prologue')
    STAMP(C)
    C(f'''
    s_lshl_b32 s{sT[0]}, s{sHd}, 14
    v_lshlrev_b32 v{T[1]}, 8, v{vI15}
    v_add_u32 v{T[1]}, s{sT[0]}, v{T[1]}
    v_xor_b32 v{T[2]}, v{vI4}, v{vI15}
    v_lshl_add_u32 v{vKA[0][0]}, v{T[2]}, 4, v{T[1]}
    v_xor_b32 v{vKA[0][1]}, 64, v{vKA[0][0]}
    v_xor_b32 v{vKA[0][2]}, 128, v{vKA[0][0]}
    v_xor_b32 v{vKA[0][3]}, 192, v{vKA[0][0]}
    ''')
    for ks in range(4): C(f'v_add_u32 v{vKA[1][ks]}, 0x10000, v{vKA[0][ks]}')
    C('s_waitcnt vmcnt(0) lgkmcnt(0)\ns_barrier')
    C.need('W=', 'X=')
    def krd(slot, f): return f'ds_read_b128 {Kf(f)}, v{vKA[slot>>1][f%4]} offset:{(slot&1)*32768+(f//4)*4096}'
    def vrd(slot, dt, e): return f'ds_read_b64_tr_b16 {Vf(dt, e)}, v{vVA[slot>>1][dt]} offset:{(slot&1)*32768+e*4096}'
    for f in range(8): C(krd(0, f))
    conv = []
    for ks in range(4):
        cv = []
        for rt in range(5):
            for b in (accb(2*ks, rt), accb(2*ks+1, rt)):
                cv += [f'v_mul_f32 v{b+i}, s{sScale}, v{b+i}' for i in range(4)]
        for rt in range(5):
            a0 = accb(2*ks, rt); a1 = accb(2*ks+1, rt); d = Qb(ks, rt)
            cv += [f'v_cvt_pk_bf16_f32 v{d}, v{a0}, v{a0+1}', f'v_cvt_pk_bf16_f32 v{d+1}, v{a0+2}, v{a0+3}',
                   f'v_cvt_pk_bf16_f32 v{d+2}, v{a1}, v{a1+1}', f'v_cvt_pk_bf16_f32 v{d+3}, v{a1+2}, v{a1+3}']
        for sw in ('v_permlane32_swap_b32', 'v_permlane16_swap_b32'):
            for rt in range(5):
                d = Qb(ks, rt)
                cv += [f'{sw} v{d}, v{d+2}', f'{sw} v{d+1}, v{d+3}']
        if ks:
            q = [f'{MF} {S(kt, rt)}, {Kf(kt*4+ks-1)}, {Q(ks-1, rt)}, {S(kt, rt) if ks-1 else 0}' for kt in range(2) for rt in range(5)]
            cv = weave(cv, q, 6)
        conv += cv
    kvl = []
    for sl in (1, 2, 3):
        kvl += [k_piece(sl, j) for j in range(4)]
        if sl < 3: kvl += [v_piece(sl, j) for j in range(4)]
    put(C, weave(conv, kvl, 16))
    va = lines(f'''
    s_lshl_b32 s{sT[0]}, s{sHd}, 14
    s_add_u32 s{sT[0]}, s{sT[0]}, 8192
    v_lshrrev_b32 v{T[1]}, 2, v{vL}
    v_lshlrev_b32 v{T[1]}, 8, v{T[1]}
    v_and_b32 v{T[2]}, 3, v{vL}
    v_lshl_add_u32 v{T[1]}, v{T[2]}, 3, v{T[1]}
    v_add_u32 v{T[1]}, s{sT[0]}, v{T[1]}
    v_bfe_u32 v{T[2]}, v{vL}, 2, 3
    ''')
    for dt in range(8):
        va += [f'v_xor_b32 v{T[3]}, {dt}, v{T[2]}', f'v_lshl_add_u32 v{vVA[0][dt]}, v{T[3]}, 5, v{T[1]}', f'v_add_u32 v{vVA[1][dt]}, 0x10000, v{vVA[0][dt]}']
    q = [f'{MF} {S(kt, rt)}, {Kf(kt*4+3)}, {Q(3, rt)}, {S(kt, rt)}' for kt in range(2) for rt in range(5)]
    put(C, weave(va, q, 2))
    C.need('K1', 'lgkm')
    C('s_barrier')
    put(C, [krd(1, f) for f in range(8)])
    C(f'''
    s_lshl_b32 s{sT[0]}, s{sQd}, 21
    s_lshl_b32 s{sT[1]}, s{sJ}, 9
    s_add_u32 s{sT[0]}, s{sT[0]}, s{sT[1]}
    s_lshl_b32 s{sT[1]}, s{sHd}, 8
    s_add_u32 s{sT[0]}, s{sT[0]}, s{sT[1]}
    ''')
    put(C, srd(SW, 64, f's{sT[0]}', 1023*2048+256))
    C(f'''
    s_lshl_b32 s{sT[0]}, s{sBr}, 3
    s_add_u32 s{sT[0]}, s{sT[0]}, s{sB}
    s_lshl_b32 s{sT[1]}, s{sT[0]}, 2
    s_add_u32 s{sT[1]}, s{sT[1]}, s{sQd}
    s_mul_i32 s{sT[1]}, s{sT[1]}, {8*40960}
    ''')
    put(C, srd(SX, 90, f's{sT[1]}', 16*20480))
    C(f's_lshl_b32 s{sT[0]}, s{sT[0]}, 4')
    put(C, srd(56, 6, f's{sT[0]}', 4))
    C(f'''
    s_lshl_b32 s{sT[0]}, s{sRh}, 14
    v_lshlrev_b32 v{T[0]}, 1, v{vI4}
    v_xor_b32 v{T[0]}, v{T[0]}, v{vI15}
    v_lshlrev_b32 v{T[0]}, 4, v{T[0]}
    v_lshl_add_u32 v{T[0]}, v{vI4}, 11, v{T[0]}
    v_add_u32 v{vW[0]}, s{sT[0]}, v{T[0]}
    v_add_u32 v{vW[1]}, {16*2048 - 1024}, v{vW[0]}
    v_xor_b32 v{T[0]}, 128, v{vW[0]}
    v_add_u32 v{vW[2]}, {4*2048 - 2048}, v{T[0]}
    v_add_u32 v{vW[3]}, {20*2048 - 3072}, v{T[0]}
    s_lshl_b32 s{sT[0]}, s{sWave}, 12
    s_add_u32 s{sWm}, s{sT[0]}, {co.WB + 3*16384}
    s_add_u32 s{sWend}, s{sT[0]}, {co.WB + 5*16384}
    s_lshl_b32 s{sMask}, s{sQd}, 1
    s_lshl_b32 s{sQd}, s{sJ}, 2
    s_lshl_b32 s{sJ}, s{sJ}, 19
    s_mov_b32 s{sWt}, 0
    s_mov_b32 s{sWo}, s{sJ}
    v_mov_b32 v{vOne}, 1
    s_lshl_b32 s{sT[0]}, s{sWave}, 8
    v_lshlrev_b32 v{T[0]}, 2, v{vL}
    v_add_u32 v{T[0]}, s{sT[0]}, v{T[0]}
    s_mov_b32 s{sSpin}, 0
    ''')
    C(f'buffer_atomic_add v{vOne}, v{T[0]}, s[56:59], 0 offen sc1')
    mx = []
    for rt in range(5):
        a = Sb(0, rt); b = Sb(1, rt); m = 160 + rt*4
        mx += [f'v_max3_f32 v{m}, v{a}, v{a+1}, v{a+2}', f'v_max3_f32 v{m+1}, v{a+3}, v{b}, v{b+1}',
               f'v_max3_f32 v{m}, v{m}, v{b+2}, v{b+3}', f'v_max_f32 v{m}, v{m}, v{m+1}']
    for sw in ('v_permlane32_swap_b32', 'v_permlane16_swap_b32'):
        mx += [f'v_mov_b32 v{160+rt*4+1}, v{160+rt*4}' for rt in range(5)]
        mx += [f'{sw} v{160+rt*4+1}, v{160+rt*4}' for rt in range(5)]
        mx += [f'v_max_f32 v{160+rt*4}, v{160+rt*4}, v{160+rt*4+1}' for rt in range(5)]
    for i in (1, 2, 3, 0):
        mx += [f'v_sub_f32 v{160+rt*4+i}, 0, v{160+rt*4}' for rt in range(5)]
    for kt in range(2):
        for rt in range(5):
            mx += [f'v_add_f32 v{Sb(kt,rt)+i}, v{Sb(kt,rt)+i}, v{160+rt*4}' for i in range(4)]
    def softmax_ops(kt, par):
        r = []
        for rt in range(5):
            b = Sb(kt, rt); p = Pb(par, rt) + 2*kt
            blk = [f'v_exp_f32 v{b}, v{b}', f'v_exp_f32 v{b+1}, v{b+1}', f'v_exp_f32 v{b+2}, v{b+2}',
                   f'v_cvt_pk_bf16_f32 v{p}, v{b}, v{b+1}', f'v_exp_f32 v{b+3}, v{b+3}', f'v_cvt_pk_bf16_f32 v{p+1}, v{b+2}, v{b+3}']
            if rt:
                last = r.pop()
                r += [blk[0], last] + blk[1:]
            else: r += blk
        return r
    mx += softmax_ops(0, 0) + softmax_ops(1, 0)
    put(C, weave(mx, [k_piece(0, j) for j in range(4)] + [v_piece(3, 0)] + w_tile(co) + w_tile(co), 12))
    C(f's_mov_b32 s{sCnt}, 0')
    STAMP(C)

    A = Block('attention loop')
    A(f'{name}_aloop:')
    for s in range(4):
        par = s % 2
        mf = [f'{MF} {S(f//4, rt)}, {Kf(f)}, {Q(f%4, rt)}, {S(f//4, rt) if f%4 else NM(rt)}' for f in range(8) for rt in range(5)]
        mf += [f'{MF} {L(rt)}, {ONES}, {Pf(par, rt)}, {L(rt)}' for rt in range(5)]
        mf += [f'{MF} {O(dt, rt)}, {Vf(dt)}, {Pf(par, rt)}, {O(dt, rt)}' for dt in range(8) for rt in range(5)]
        F = {}
        def add(g, *its): F.setdefault(g, []).extend(flat(list(its)))
        for k in range(16): add(1 + 2*k, vrd(s, k // 2, k % 2))
        nk = (s + 2) % 4
        add(43, NEED(f'K{nk}', f'V{(s+1)%4}', 'lgkm'), 's_barrier')
        for f in range(8): add(45 + 4*f, krd(nk, f))
        def dma(g, u):
            add(g - 1, u[0]); add(g, u[1])
            if len(u) > 2: add(g + 1, u[2])
        for j, g in enumerate([47, 55, 63, 71]): dma(g, k_piece((s + 1) % 4, j))
        dma(79, v_piece(s, 0))
        for j, g in enumerate([4, 12, 20]): dma(g, v_piece((s + 3) % 4, j + 1))
        if s == 3:
            add(0, f's_add_u32 s{sCnt}, s{sCnt}, 1')
            add(83, f's_cmp_lt_u32 s{sCnt}, 8')
        g = 22
        for it in softmax_ops(0, 1 - par) + softmax_ops(1, 1 - par):
            cap = 1 if 'exp' in it else 2
            while len(F.get(g, [])) > cap or g == 84: g += 1
            add(g, it); g += 1
        assert g <= 85, g
        A.extend(interleave(mf, F))
    A(f's_cbranch_scc1 {name}_aloop')

    E = Block('attention epilogue')
    STAMP(E)
    E(f'''
    s_mul_i32 s{sT[0]}, s{sRh}, 10240
    v_lshlrev_b32 v{T[0]}, 4, v{vL}
    v_add_u32 v{vSg}, s{sT[0]}, v{T[0]}
    s_mul_i32 s{sT[1]}, s{sHd}, 40960
    v_add_u32 v{vSt}, s{sT[1]}, v{vSg}
    v_mov_b32 v{vXA[0]}, v{vSg}
    v_add_u32 v{vXA[1]}, 1024, v{vSg}
    s_mul_i32 s{sT[0]}, s{sWave}, 5120
    v_add_u32 v{vX[0]}, s{sT[0]}, v{T[0]}
    v_mov_b32 v{vX[1]}, v{vX[0]}
    v_mov_b32 v{vX[2]}, v{vX[0]}
    v_mov_b32 v{vX[3]}, v{vX[0]}
    v_add_u32 v{vX[4]}, 4096, v{vX[0]}
    s_mov_b32 s{sXm}, s{sT[0]}
    s_add_u32 s{sXm2}, s{sXm}, 4096
    s_add_u32 s{sXend}, s{sXm}, {co.NX*20480}
    s_mov_b32 s{sXt}, 4
    s_xor_b32 s{sXo}, s{sXt}, s{sQd}
    s_mul_i32 s{sXo}, s{sXo}, 20480
    s_mov_b32 s{sWrp}, 3
    s_mov_b32 s{sXrp}, 0
    s_mov_b32 s{sWneg}, {-(co.NW-1)*16384}
    s_mov_b32 s{sXneg}, {-(co.NX-1)*20480}
    s_waitcnt vmcnt(0) lgkmcnt(0)
    s_barrier
    v_mov_b32 v{T[0]}, 0
    ''')
    E(f'buffer_load_dword v{vF}, v{T[0]}, s[56:59], 0 offen sc1')
    for rt in range(5): E(f'v_accvgpr_read_b32 v{80+rt}, a{160+rt*4}')
    for rt in range(5): E(f'v_rcp_f32 v{80+rt}, v{80+rt}')
    k = 0
    wl = w_tile(co) + w_tile(co) + w_tile(co, wrap=False)
    ep = []
    for u in range(4):
        for rt in range(5):
            t = 88 + (k % 4) * 8; d = 120 + (k % 8) * 4; k += 1
            off = (u >> 1) * 20480 + rt * 2048 + (u & 1) * 1024
            for e in range(2):
                ep += [f'v_accvgpr_read_b32 v{t+4*e+i}, a{Ob(2*u+e, rt)+i}' for i in range(4)]
            ep += [f'v_mul_f32 v{t+i}, v{t+i}, v{80+rt}' for i in range(8)]
            ep += [f'v_cvt_pk_bf16_f32 v{d+i}, v{t+2*i}, v{t+2*i+1}' for i in range(4)]
            ep += [[f's_movk_i32 s{sT[0]}, {off & ~4095}',
                    (f'buffer_store_dwordx4 v[{d}:{d+3}], v{vSg}, s[{SO}:{SO+3}], s{sT[0]} offen offset:{off & 4095} sc1', 'O'),
                    f'ds_write_b128 v{vSt}, v[{d}:{d+3}] offset:{off}']]
    put(E, ep)
    wa = lines(f'''
    v_bfe_u32 v{T[0]}, v{vL}, 2, 2
    v_lshl_add_u32 v{T[1]}, v{vI4}, 3, v{T[0]}
    v_lshlrev_b32 v{T[1]}, 8, v{T[1]}
    v_and_b32 v{T[2]}, 3, v{vL}
    v_lshl_add_u32 v{T[1]}, v{T[2]}, 3, v{T[1]}
    s_lshl_b32 s{sT[0]}, s{sHd}, 13
    s_add_u32 s{sT[0]}, s{sT[0]}, {co.WB + 3*16384}
    v_add_u32 v{T[1]}, s{sT[0]}, v{T[1]}
    v_bfe_u32 v{T[2]}, v{vL}, 2, 3
    v_xor_b32 v{T[2]}, s{sMask}, v{T[2]}
    ''')
    for dt in range(8): wa += [f'v_xor_b32 v{T[3]}, {dt}, v{T[2]}', f'v_lshl_add_u32 v{vWA[dt]}, v{T[3]}, 5, v{T[1]}']
    wa += lines(f'''
    v_lshrrev_b32 v{T[0]}, 2, v{vL}
    v_add_u32 v{T[0]}, 1, v{T[0]}
    v_lshlrev_b32 v{T[0]}, 3, v{T[0]}
    v_xor_b32 v{T[0]}, s2, v{T[0]}
    v_and_b32 v{T[1]}, 3, v{vL}
    v_lshlrev_b32 v{T[1]}, 2, v{T[1]}
    v_lshl_add_u32 v{vFo}, v{T[0]}, 7, v{T[1]}
    v_cmp_lt_u32 vcc, 11, v{vL}
    v_mov_b32 v{T[0]}, 0x100000
    v_cndmask_b32 v{vFo}, v{vFo}, v{T[0]}, vcc
    ''')
    put(E, weave(wa, wl, 3))
    put(E, w_radv(co)); put(E, x_radv(co))
    E(f'''
    v_readfirstlane_b32 s{sT[0]}, v{vF}
    s_cmp_eq_u32 s{sT[0]}, 16
    s_cbranch_scc0 {name}_famwait
    {name}_famok:
    ''')
    E.need('W+', 'lgkm')
    E('s_barrier')
    STAMP(E)
    put(E, gemm_head(co))

    def poll_items(tagname):
        return {17: [f'buffer_load_dword v{vF}, v{vFo}, s[{SF}:{SF+3}], 0 offen sc1'],
                70: [f's_and_b32 s{sT[0]}, s{sXt}, 28', f's_sub_u32 s{sT[0]}, s{sT[0]}, 4'],
                72: [f's_lshl_b32 s{sMask}, 15, s{sT[0]}', f's_and_b32 s{sMask}, s{sMask}, 0xfff'],
                74: [f'v_cmp_ne_u32 vcc, 1, v{vF}'],
                75: [f's_and_b32 s{sT[0]}, vcc_lo, s{sMask}', f's_cbranch_scc1 {name}_slow_{tagname}', f'{name}_back_{tagname}:']}
    O0 = Block('oproj it0')
    O0.extend(gemm_body(co, zero=True, xload=False, xneed=False,
                        extra={47: [NEED('O'), f'buffer_store_dword v{vOne}, v{vFs}, s[{SF}:{SF+3}], 0 offen sc1']}))
    O1 = Block('oproj it1')
    O1.extend(gemm_body(co, xload=False, xneed=False, extra=poll_items('a')))
    O1(f's_mov_b32 s{sCnt}, 2')
    O1.need('X$')
    OB = Block('oproj loop')
    OB(f'{name}_oloop:')
    OB.extend(gemm_body(co, nit=16, extra=poll_items('b')))
    OB(f's_cbranch_scc1 {name}_oloop')

    X = Block('exchange')
    STAMP(X)
    put(X, srd(SO, 90, WS_PX, 256*61440))
    put(X, srd(SK, 4, 0, 8*160*2048*2))
    X(f'''
    s_mul_i32 s{sT[1]}, s{sWave}, 5120
    v_lshlrev_b32 v{T[0]}, 4, v{vL}
    v_add_u32 v{T[0]}, s{sT[1]}, v{T[0]}
    v_add_u32 v{T[1]}, 4096, v{T[0]}
    ''')
    for p in range(1, 4):
        X(f'''
        s_xor_b32 s{sT[0]}, s2, {p}
        s_mul_i32 s{sT[0]}, s{sT[0]}, 61440
        s_add_u32 s{sT[0]}, s{sT[0]}, {(p-1)*20480}
        ''')
        for rt in range(5):
            a0 = accb(2*p, rt); a1 = accb(2*p+1, rt); d = ((p-1)*5+rt)*4
            put(X, [f'v_cvt_pk_bf16_f32 v{d}, v{a0}, v{a0+1}', f'v_cvt_pk_bf16_f32 v{d+1}, v{a0+2}, v{a0+3}',
                    f'v_cvt_pk_bf16_f32 v{d+2}, v{a1}, v{a1+1}', f'v_cvt_pk_bf16_f32 v{d+3}, v{a1+2}, v{a1+3}'])
            if rt < 4: X(f'buffer_store_dwordx4 v[{d}:{d+3}], v{T[0]}, s[{SO}:{SO+3}], s{sT[0]} offen offset:{rt*1024} sc1')
            else: X(f'buffer_store_dwordx4 v[{d}:{d+3}], v{T[1]}, s[{SO}:{SO+3}], s{sT[0]} offen sc1')
    X(f'''
    v_add_u32 v{T[2]}, 1, v{vL}
    v_xor_b32 v{T[2]}, s2, v{T[2]}
    s_lshl_b32 s{sT[0]}, s{sWave}, 2
    s_add_u32 s{sT[0]}, s{sT[0]}, 16
    v_lshlrev_b32 v{T[2]}, 7, v{T[2]}
    v_add_u32 v{vFo}, s{sT[0]}, v{T[2]}
    v_cmp_lt_u32 vcc, 2, v{vL}
    v_mov_b32 v{T[2]}, 0x100000
    v_cndmask_b32 v{vFo}, v{vFo}, v{T[2]}, vcc
    s_mul_i32 s{sT[0]}, s{sB}, {160*4096}
    s_mul_i32 s{sT[1]}, s{sRh}, {80*4096}
    s_add_u32 s{sT[0]}, s{sT[0]}, s{sT[1]}
    s_lshl_b32 s{sT[1]}, s{sBr}, 11
    s_add_u32 s{sT[0]}, s{sT[0]}, s{sT[1]}
    s_lshr_b32 s{sT[1]}, s{sJ}, 10
    s_add_u32 s{sT[0]}, s{sT[0]}, s{sT[1]}
    s_lshl_b32 s{sT[1]}, s{sHd}, 8
    s_add_u32 s{sT[0]}, s{sT[0]}, s{sT[1]}
    s_and_b32 s{sT[1]}, s2, 3
    s_lshl_b32 s{sT[1]}, s{sT[1]}, 6
    s_add_u32 s{sT[0]}, s{sT[0]}, s{sT[1]}
    v_lshlrev_b32 v{T[2]}, 12, v{vI15}
    v_lshl_add_u32 v{T[2]}, v{vI4}, 4, v{T[2]}
    v_add_u32 v{T[2]}, s{sT[0]}, v{T[2]}
    s_mul_i32 s{sT[0]}, s2, 61440
    s_mov_b32 s{sXo}, 0x3f80
    s_mov_b32 s{sWo}, 0x3f800000
    s_waitcnt vmcnt(0)
    buffer_store_dword v{vOne}, v{vFs}, s[{SF}:{SF+3}], 0 offen offset:16 sc1
    {name}_poll2:
    s_add_u32 s{sSpin}, s{sSpin}, 1
    s_cmp_gt_u32 s{sSpin}, {SPIN}
    s_cbranch_scc1 {name}_poll2x
    buffer_load_dword v{vF}, v{vFo}, s[{SF}:{SF+3}], 0 offen sc1
    s_waitcnt vmcnt(0)
    v_cmp_ne_u32 vcc, 1, v{vF}
    s_and_b32 s{sT[1]}, vcc_lo, 7
    s_cbranch_scc1 {name}_poll2
    {name}_poll2x:
    ''')
    STAMP(X)
    for p in range(3):
        for rt in range(5):
            d = (p*5+rt)*4
            if rt < 4: X(f'buffer_load_dwordx4 v[{d}:{d+3}], v{T[0]}, s[{SO}:{SO+3}], s{sT[0]} offen offset:{rt*1024} sc1')
            else: X(f'buffer_load_dwordx4 v[{d}:{d+3}], v{T[1]}, s[{SO}:{SO+3}], s{sT[0]} offen sc1')
        if p < 2: X(f's_add_u32 s{sT[0]}, s{sT[0]}, 20480')
    for p in range(3):
        for rt in range(5):
            d = (p*5+rt)*4
            for i in range(4):
                a = accb(i >> 1, rt) + (i & 1) * 2
                X(f'v_dot2c_f32_bf16 v{a}, s{sXo}, v{d+i}\nv_dot2c_f32_bf16 v{a+1}, s{sWo}, v{d+i}')
    for rt in range(5):
        x = accb(0, rt); y = accb(1, rt); d = 120 + rt * 4
        put(X, [f'v_cvt_pk_bf16_f32 v{d}, v{x}, v{x+1}', f'v_cvt_pk_bf16_f32 v{d+1}, v{x+2}, v{x+3}',
                f'v_cvt_pk_bf16_f32 v{d+2}, v{y}, v{y+1}', f'v_cvt_pk_bf16_f32 v{d+3}, v{y+2}, v{y+3}'])
    for sw in ('v_permlane32_swap_b32', 'v_permlane16_swap_b32'):
        for rt in range(5):
            d = 120 + rt * 4
            X(f'{sw} v{d}, v{d+2}\n{sw} v{d+1}, v{d+3}')
    for rt in range(5):
        d = 120 + rt * 4
        X(f's_mov_b32 s{sT[0]}, {rt*16*4096}')
        X(f'buffer_store_dwordx4 v[{d}:{d+3}], v{T[2]}, s[{SK}:{SK+3}], s{sT[0]} offen')
    if stamp:
        X('s_waitcnt vmcnt(0)')
        STAMP(X); STAMP(X, True)
        X('s_waitcnt lgkmcnt(0)')
        put(X, srd(40, 90, WS_ST, 0x100000))
        assert nstamp[0] <= 11
        for i in range(22): X(f'v_mov_b32 v{4+i}, s{68+min(i, 2*nstamp[0]-1)}')
        X(f'v_mov_b32 v26, s{sSpin}\nv_mov_b32 v27, 0')
        X(f'''
        s_lshl_b32 s36, s2, 2
        s_add_u32 s36, s36, s{sWave}
        s_lshl_b32 s36, s36, 7
        v_lshlrev_b32 v3, 20, v{vL}
        v_add_u32 v3, s36, v3
        ''')
        for i in range(6): X(f'buffer_store_dwordx4 v[{4+4*i}:{7+4*i}], v3, s[40:43], 0 offen offset:{16*i}')
    X(f'{name}_done:\ns_endpgm')
    Z = Block('slow paths')
    Z(f'''
    {name}_famwait:
    s_add_u32 s{sSpin}, s{sSpin}, 1
    s_cmp_gt_u32 s{sSpin}, {SPIN}
    s_cbranch_scc1 {name}_famok
    s_sleep 4
    v_mov_b32 v{T[0]}, 0
    buffer_load_dword v{vF}, v{T[0]}, s[56:59], 0 offen sc1
    s_waitcnt vmcnt(0)
    v_readfirstlane_b32 s{sT[0]}, v{vF}
    s_nop 1
    s_cmp_eq_u32 s{sT[0]}, 16
    s_cbranch_scc0 {name}_famwait
    s_branch {name}_famok
    ''')
    for tg in 'ab':
        Z(f'''
        {name}_slow_{tg}:
        s_add_u32 s{sSpin}, s{sSpin}, 1
        s_cmp_gt_u32 s{sSpin}, {SPIN}
        s_cbranch_scc1 {name}_back_{tg}
        buffer_load_dword v{vF}, v{vFo}, s[{SF}:{SF+3}], 0 offen sc1
        s_waitcnt vmcnt(0)
        v_cmp_ne_u32 vcc, 1, v{vF}
        s_nop 1
        s_and_b32 s{sT[0]}, vcc_lo, s{sMask}
        s_cbranch_scc1 {name}_slow_{tg}
        s_branch {name}_back_{tg}
        ''')
    resolve([[P, G, G, G, G, G, C, A, A, A, E, O0, O1, OB, OB, OB, OB, OB, X]], lookahead=14)
    if report:
        for b in (P, G, C, A, E, O0, O1, OB, X): print(b.name, est(b, show=b in (G, A, O0, O1, OB)))
    G.ins = [x for x in G.ins if not any(p in x.text for p in ablG)]
    A.ins = [x for x in A.ins if not any(p in x.text for p in ablA)]
    OB.ins = [x for x in OB.ins if not any(p in x.text for p in ablO)]
    return kernel_text(name, [P, G, C, A, E, O0, O1, OB, X, Z], nv=512, acc=256, ns=102), LDS
```

```python
import fz, sys
KN = 'concat_heads__mha_block_cached__gqa_block_cached__near_ridge'
def build(stamp=False, hdr='', **o):
    (t, d), lds = fz.gen(KN + '_kernel', stamp=stamp, **o)
    return (hdr + f'; @launch grid=(256,1,1) block=(256,1,1) lds={lds}\n'
            '.amdgcn_target "amdgcn-amd-amdhsa--gfx950"\n' + t + d)
if __name__ == '__main__':
    if len(sys.argv) > 1 and sys.argv[1] == 'final':
        hdr = open(f'cdna_kernels/{KN}.s.ref').read().split('; Override launch')[0]
        open(f'cdna_kernels/{KN}.s', 'w').write(build(hdr=hdr))
    else:
        open('full.s', 'w').write(build(stamp=True, report=True))
```
